```python
import torch

def _softmax(x, axis=-1):
    return torch.softmax(x, dim=axis)
def _gelu(x):
    return torch.nn.functional.gelu(x, approximate="tanh")
def _silu(x):
    return torch.nn.functional.silu(x)
def _sigmoid(x):
    return torch.sigmoid(x)
def _layernorm(x, axis=-1, eps=1e-5):
    m = x.mean(dim=axis, keepdim=True)
    v = x.var(dim=axis, keepdim=True, unbiased=False)
    return (x - m) / torch.sqrt(v + eps)
def _scatter_add(tgt, idx, src, axis=0):
    return tgt.clone().index_add_(axis, idx, src)
def _segment_sum(src, seg, n):
    out = torch.zeros((n,) + src.shape[1:], dtype=src.dtype)
    return out.index_add_(0, seg, src)
def _pad(x, pw):
    flat = tuple(v for pair in reversed(pw) for v in pair)
    return torch.nn.functional.pad(x, flat)

kernel_name = 'sequential_preLN__linear_kernel_hedgehog__dense_activation_squared_relu__prompt'

def setup_inputs():

    _w = (lambda a: (lambda t: t.to(torch.bfloat16) if t.is_floating_point() else t)(torch.as_tensor(a)))
    def _A_setup():
        B, S, D, H = 1, 2048, 640, 32
        Dh = D // H
        return {
            "x": _w((lambda *s: torch.randn(*s, dtype=torch.bfloat16) * 0.05)(B, S, D)),
            "wqkv": _w((lambda *s: torch.randn(*s, dtype=torch.bfloat16) * 0.2)(D, 3 * D)),
            "w_phi": _w((lambda *s: torch.randn(*s, dtype=torch.bfloat16) * 0.2)(H, Dh, Dh) * (Dh ** -0.5)),
            "wo": _w((lambda *s: torch.randn(*s, dtype=torch.bfloat16) * 0.05)(D, D)),
        }
    _A_in = _A_setup()

    def _B_setup():
        B, S, D, F = 1, 2048, 640, 1728
        return {
            "x": _w((lambda *s: torch.randn(*s, dtype=torch.bfloat16) * 0.05)(B, S, D)),
            "w1": _w((lambda *s: torch.randn(*s, dtype=torch.bfloat16) * 0.05)(D, F)),
            "b1": _w((lambda *s: torch.randn(*s, dtype=torch.bfloat16) * 0.4)(F)),
            "w2": _w((lambda *s: torch.randn(*s, dtype=torch.bfloat16) * 0.05)(F, D)),
            "b2": _w((lambda *s: torch.randn(*s, dtype=torch.bfloat16) * 1.6)(D)),
        }
    _B_in = _B_setup()

    return {
        "A_x": _A_in["x"],
        "A_wqkv": _A_in["wqkv"],
        "A_w_phi": _A_in["w_phi"],
        "A_wo": _A_in["wo"],
        "B_x": _B_in["x"],
        "B_w1": _B_in["w1"],
        "B_b1": _B_in["b1"],
        "B_w2": _B_in["w2"],
        "B_b2": _B_in["b2"],
    }

def reference(A_x, A_wqkv, A_w_phi, A_wo, B_x, B_w1, B_b1, B_w2, B_b2):
    def _A_ref(x, wqkv, w_phi, wo):
        B, S, D = x.shape
        H = 32; Dh = D // H
        qkv = (lambda x, *d: x.permute(*d))((x @ wqkv).reshape(B, S, 3, H, Dh), 2, 0, 3, 1, 4)
        q, k, v = qkv[0], qkv[1], qkv[2]
        pq = torch.einsum("bhsd,hdf->bhsf", q, w_phi)
        pk = torch.einsum("bhsd,hdf->bhsf", k, w_phi)
        phi_q = torch.concatenate([_softmax(pq, axis=-1), _softmax(-pq, axis=-1)], axis=-1)
        phi_k = torch.concatenate([_softmax(pk, axis=-1), _softmax(-pk, axis=-1)], axis=-1)
        kv = torch.einsum("bhsf,bhsd->bhfd", phi_k, v)
        z  = torch.einsum("bhsf->bhf", phi_k)
        num = torch.einsum("bhqf,bhfd->bhqd", phi_q, kv)
        den = torch.einsum("bhqf,bhf->bhq", phi_q, z)[..., None] + 1e-6
        o = num / den
        return (lambda x, *d: x.permute(*d))(o, 0, 2, 1, 3).reshape(B, S, D) @ wo

    def _B_ref(x, w1, b1, w2, b2):
        h = torch.einsum("bsd,df->bsf", x, w1) + b1
        zero = torch.zeros_like(h)
        r = torch.where(h > zero, h, zero)
        h = r * r
        out = torch.einsum("bsf,fd->bsd", h, w2) + b2
        return out

    x = A_x
    h = x + _A_ref(_layernorm(x, axis=-1), A_wqkv, A_w_phi, A_wo)
    h2 = h + _B_ref(_layernorm(h, axis=-1), B_w1, B_b1, B_w2, B_b2)
    return h2
```

```python
import re

_REG = re.compile(r"^(-|neg\()?(\|)?(abs\()?([vas])(\d+|\[(\d+):(\d+)\])")


def regs_of(op):
    op = op.strip()
    if op in ("vcc", "exec", "m0", "scc"):
        return [(op, 0)]
    if op in ("vcc_lo", "vcc_hi"):
        return [("vcc", 0)]
    if op in ("exec_lo", "exec_hi"):
        return [("exec", 0)]
    m = _REG.match(op)
    if not m:
        return []
    k = m.group(4)
    if m.group(6) is not None:
        return [(k, i) for i in range(int(m.group(6)), int(m.group(7)) + 1)]
    return [(k, int(m.group(5)))]


class R:
    def __init__(self, kind, base, n):
        self.kind, self.base, self.n = kind, base, n

    def __getitem__(self, i):
        if isinstance(i, slice):
            a = i.start or 0
            b = self.n if i.stop is None else i.stop
            assert 0 <= a < b <= self.n, (a, b, self.n)
            return R(self.kind, self.base + a, b - a)
        assert 0 <= i < self.n, (i, self.n)
        return R(self.kind, self.base + i, 1)

    def __str__(self):
        if self.n == 1:
            return f"{self.kind}{self.base}"
        return f"{self.kind}[{self.base}:{self.base + self.n - 1}]"

    __repr__ = __str__

    def __format__(self, spec):
        return str(self)


TRANS = ("v_exp_f32", "v_log_f32", "v_rcp_f32", "v_rsq_f32", "v_sqrt_f32", "v_sin_f32", "v_cos_f32")
S_NODST = ("s_cmp", "s_waitcnt", "s_barrier", "s_branch", "s_cbranch", "s_nop", "s_endpgm", "s_sleep",
           "s_setprio", "s_bitcmp")


class Ins:
    __slots__ = ("text", "mn", "kind", "rd", "wr", "srcC", "passes", "weight", "dpp", "wide_store", "data", "cond")

    def __init__(self, text):
        self.text = text
        t = text.split(";")[0].strip()
        parts = t.split(None, 1)
        self.mn = mn = parts[0]
        rest = parts[1] if len(parts) > 1 else ""
        ops = [o.strip() for o in rest.split(",")] if rest else []
        if ops:
            ops = [o.split()[0] if o.split() else o for o in ops]
        self.rd, self.wr, self.srcC, self.data = [], [], [], []
        self.passes = 0
        self.weight = 1
        self.dpp = False
        self.wide_store = False
        self.cond = False
        allr = lambda l: [r for o in l for r in regs_of(o)]
        if mn.endswith(":"):
            self.kind = "label"
            self.weight = 0
        elif mn.startswith("."):
            self.kind = "dir"
            self.weight = 0
        elif mn.startswith("v_mfma"):
            self.kind = "mfma"
            self.wr = regs_of(ops[0])
            self.rd = allr(ops[1:4])
            self.srcC = regs_of(ops[3])
            self.passes = 8 if "32x32" in mn else 4
        elif mn.startswith("v_"):
            self.kind = "valu"
            self.dpp = "_dpp" in mn or "row_" in rest or "quad_perm" in rest
            if mn.startswith("v_permlane") and "swap" in mn:
                self.wr = allr(ops[:2])
                self.rd = allr(ops[:2])
            elif "_co_" in mn:
                self.wr = allr(ops[:2])
                self.rd = allr(ops[2:])
            elif mn.startswith("v_nop"):
                pass
            else:
                self.wr = regs_of(ops[0])
                self.rd = allr(ops[1:])
                if mn.startswith(("v_fmac", "v_dot2c", "v_pk_fmac", "v_writelane")) or self.dpp or "sdwa" in mn:
                    self.rd += self.wr
                if mn.startswith("v_cndmask") and len(ops) == 3:
                    self.rd += [("vcc", 0)]
        elif mn.startswith("ds_"):
            self.kind = "ds"
            if mn.startswith(("ds_read", "ds_bpermute", "ds_swizzle")):
                self.wr = regs_of(ops[0])
                self.rd = allr(ops[1:])
            else:
                self.rd = allr(ops)
        elif mn.startswith(("buffer_", "global_")):
            self.kind = "vmem"
            words = rest.replace(",", " ").split()
            if "load" in mn and "lds" not in words:
                self.wr = regs_of(ops[0])
                self.rd = allr(ops[1:])
            elif "load" in mn:
                self.rd = allr(ops) + [("m0", 0)]
            else:
                self.rd = allr(ops)
                if mn.startswith("buffer_"):
                    self.data = regs_of(ops[0])
                elif len(ops) > 1:
                    self.data = regs_of(ops[1])
                self.wide_store = "x3" in mn or "x4" in mn
                if "atomic" in mn and "sc0" in words:
                    self.wr = regs_of(ops[0])
        elif mn.startswith("s_"):
            if mn.startswith(("s_load", "s_memrealtime", "s_memtime", "s_atomic")):
                self.kind = "smem"
                self.wr = regs_of(ops[0])
                self.rd = allr(ops[1:])
            else:
                self.kind = "salu"
                if mn.startswith(S_NODST):
                    self.rd = allr(ops)
                    if mn == "s_nop":
                        self.weight = int(ops[0], 0) + 1
                else:
                    self.wr = regs_of(ops[0])
                    self.rd = allr(ops[1:])
                    if "saveexec" in mn:
                        self.wr += [("exec", 0)]
        else:
            raise ValueError("unknown instruction: " + text)


def need_states(p, c):
    n = 0
    pw = set(p.wr)
    cr, cw = set(c.rd), set(c.wr)
    if p.kind == "valu":
        vw = {r for r in pw if r[0] in "va" and r[0] != "vcc"}
        sw = {r for r in pw if r[0] in ("s", "vcc")}
        isdot = p.mn.startswith("v_dot")
        if vw:
            if c.kind == "mfma" and vw & cr:
                n = max(n, 3 if isdot else 2)
            if c.kind == "valu":
                if (c.dpp or c.mn.startswith("v_permlane")) and vw & cr:
                    n = max(n, 2)
                if c.mn.startswith(("v_readlane", "v_readfirstlane")) and vw & cr:
                    n = max(n, 1)
                if p.mn.startswith(TRANS) and not c.mn.startswith(TRANS) and vw & cr:
                    n = max(n, 1)
                if p.mn.startswith(TRANS) and c.mn.startswith(TRANS) and vw & cr:
                    n = max(n, 1)
                if ("sdwa" in p.mn) and vw & (cr | cw):
                    n = max(n, 1)
            if isdot and vw & (cr | cw):
                same = c.mn == p.mn
                if same:
                    ops_ab = set(c.rd[:2]) if not c.mn.startswith("v_dot2c") else set(c.rd[:2])
                    ab = set()
                    t = c.text.split(";")[0].split(None, 1)[1].split(",")
                    for o in t[1:3]:
                        ab |= set(regs_of(o.strip().split()[0]))
                    if vw & ab:
                        n = max(n, 3)
                else:
                    n = max(n, 3)
        if sw:
            if c.kind == "vmem" and sw & cr:
                n = max(n, 5)
            if c.kind == "valu" and sw & cr:
                n = max(n, 4 if c.mn.startswith(("v_readlane", "v_writelane")) else 2)
            if c.kind in ("salu", "smem") and sw & cr:
                n = max(n, 1)
        if ("exec", 0) in pw:
            n = max(n, 5)
    elif p.kind == "mfma":
        big = {4: 8, 8: 12}[p.passes]
        if c.kind == "mfma":
            ab = set(c.rd) - set(c.srcC) if False else None
            t = c.text.split(";")[0].split(None, 1)[1].split(",")
            ab = set(regs_of(t[1].strip())) | set(regs_of(t[2].strip()))
            if pw & ab:
                n = max(n, big)
            if pw & set(c.srcC):
                if not (list(p.wr) == list(c.srcC) and p.passes == c.passes):
                    n = max(n, big - 2)
            elif pw & cw:
                n = max(n, big - 2)
        elif c.kind in ("valu", "vmem", "ds"):
            if pw & (cr | cw):
                n = max(n, big)
        if c.kind == "valu" and set(p.srcC) & cw:
            n = max(n, {4: 3, 8: 7}[p.passes])
    elif p.kind == "salu":
        if ("m0", 0) in pw and c.kind == "vmem" and ("m0", 0) in cr:
            n = max(n, 1)
    elif p.kind == "vmem":
        if p.wide_store and set(p.data) & cw:
            n = max(n, 2)
    return n


class Asm:
    def __init__(self):
        self.ins = []
        self.vmq = []
        self.lgq = []
        self.smem_pending = set()
        self.cond = 0
        self.uncounted = False
        self.free = {"v": [True] * 256, "a": [True] * 256}
        self.names = {}
        self.hi = {"v": 0, "a": 0}
        self.nlabel = 0

    def alloc(self, n, kind="v", align=None, at=None):
        if align is None:
            align = 1 if n == 1 else 2
        kinds = ["a", "v"] if kind == "x" else (["v", "a"] if kind == "y" else [kind])
        for k in kinds:
            fr = self.free[k]
            rng = [at] if at is not None else range(0, 256 - n + 1, align)
            for b in rng:
                if all(fr[b:b + n]):
                    for i in range(b, b + n):
                        fr[i] = False
                    self.hi[k] = max(self.hi[k], b + n)
                    return R(k, b, n)
        raise RuntimeError(f"out of registers: {n} {kind}; free v={sum(self.free['v'])} a={sum(self.free['a'])}")

    def release(self, *rs):
        for r in rs:
            if isinstance(r, (list, tuple)):
                self.release(*r)
                continue
            for i in range(r.base, r.base + r.n):
                assert not self.free[r.kind][i], f"double free {r}"
                self.free[r.kind][i] = True

    def nfree(self):
        return sum(self.free["v"]), sum(self.free["a"])

    def _raw(self, text):
        i = Ins(text)
        i.cond = self.cond
        self.ins.append(i)
        return i

    def _pad(self, c):
        need = 0
        dist = 0
        for p in reversed(self.ins):
            if dist > 20:
                break
            if p.kind not in ("label", "dir"):
                n = need_states(p, c)
                if n - dist > need:
                    need = n - dist
            if not (p.cond and p.cond != c.cond):
                dist += p.weight
        if need > 0:
            self._raw(f"s_nop {need - 1}")

    def _wait_q(self, q, idx, name, cap):
        n = sum(1 for o in q[idx + 1:] if o["counted"])
        n = min(n, cap)
        self._raw(f"s_waitcnt {name}({n})")
        if self.cond:
            return
        keep = []
        cnt = 0
        for o in reversed(q):
            if cnt >= n:
                break
            keep.append(o)
            if o["counted"]:
                cnt += 1
        q[:] = list(reversed(keep))

    def _autowait(self, c):
        touch = set(c.rd) | set(c.wr)
        for q, name, cap in ((self.vmq, "vmcnt", 63), (self.lgq, "lgkmcnt", 15)):
            last = -1
            for k, o in enumerate(q):
                if o["regs"] & touch:
                    last = k
            if last >= 0:
                self._wait_q(q, last, name, cap)
        if self.smem_pending & touch:
            self._raw("s_waitcnt lgkmcnt(0)")
            if not self.cond:
                self.smem_pending.clear()
                self.lgq.clear()

    def __call__(self, text, tag=None):
        for line in text.split("\n"):
            line = line.strip()
            if not line:
                continue
            c = Ins(line)
            c.cond = self.cond
            if c.kind not in ("label", "dir"):
                self._autowait(c)
                self._pad(c)
            self.ins.append(c)
            counted = not (self.uncounted or self.cond)
            if c.kind == "vmem":
                self.vmq.append(dict(tag=tag, regs=set(c.wr), counted=counted))
            elif c.kind == "ds":
                self.lgq.append(dict(tag=tag, regs=set(c.wr), counted=counted))
            elif c.kind == "smem":
                self.smem_pending |= set(c.wr)
            elif c.mn == "s_waitcnt" and not self.cond:
                m = re.search(r"vmcnt\((\d+)\)", line)
                if m and int(m.group(1)) == 0:
                    self.vmq.clear()
                m = re.search(r"lgkmcnt\((\d+)\)", line)
                if m and int(m.group(1)) == 0:
                    self.lgq.clear()
                    self.smem_pending.clear()

    def count_vm(self, tag=None, regs=()):
        self.vmq.append(dict(tag=tag, regs=set(regs), counted=True))

    def wait_vm(self, *tags):
        last = -1
        for k, o in enumerate(self.vmq):
            if o["tag"] in tags:
                last = k
        if last >= 0:
            self._wait_q(self.vmq, last, "vmcnt", 63)

    def wait_lg(self, *tags):
        last = -1
        for k, o in enumerate(self.lgq):
            if not tags or o["tag"] in tags:
                last = k
        if last >= 0:
            self._wait_q(self.lgq, last, "lgkmcnt", 15)

    def label(self, stem="L"):
        self.nlabel += 1
        return f"{stem}_{self.nlabel}"

    def begin_cond(self):
        assert not self.cond
        self.nlabel += 1
        self.cond = self.nlabel

    def end_cond(self, drop=True):
        self.cond = 0
        if drop:
            self.vmq[:] = [o for o in self.vmq if o["counted"]]
            self.lgq[:] = [o for o in self.lgq if o["counted"]]

    def text(self):
        out = []
        for i in self.ins:
            out.append(i.text if i.kind in ("label", "dir") else "    " + i.text)
        return "\n".join(out) + "\n"
```

```python
import sys
sys.path.insert(0, "work")
from asmlib import Asm, R

NAME = "sequential_preLN__linear_kernel_hedgehog__dense_activation_squared_relu__prompt"

FLAGS = 0
XN = 0x10000
WQ = XN + 0x280000
KVP = WQ + 0x280000
KVPITCH = 3456
OF = KVP + 0xE0000
HF = OF + 0x280000
ST = HF + 0x280000
RF = ST + 0x20000
WOF = RF + 0x700000
W1F = WOF + 0xC8000
W2F = W1F + 0x230000
STAMPS = W2F + 0x230000
WS_END = STAMPS + 0x10000
WS_BYTES = 0x10000000
OOB = 0x40000000
C_X, C_W, C_KV, C_O, C_H, C_R, C_SW = 0, 16, 32, 48, 64, 80, 96

LW, LXS, LPHI, LSEC, SECP = 0, 12288, 22528, 122880, 880
LT, LKV = 0, 40960
LREDB, LREDD = 102400, 0

sW, sMI, sJ, sTB, sC, sM2, sG = "s3", "s4", "s5", "s6", "s7", "s8", "s9"
sT0, sT1, sT2, sT3, sT4, sT5 = "s10", "s11", "s12", "s13", "s14", "s15"
pX, pWQKV, pPHI, pWO, pBX, pW1, pB1, pW2, pB2, pOUT, pDBG, pWS = [16 + 2 * i for i in range(12)]
rX, rWQ, rPHI, rWS, rSEC, rTMP = 40, 44, 48, 52, 56, 60
sONES, sLO, sHI, sL2E = "s64", "s65", "s66", "s67"
sA, sB, sCc, sD = "s68", "s69", "s70", "s71"
sPF = "s72"
sSPIN = "s73"
sSECD = "s74"
sSECT = "s75"
STAMP0 = 76


def srd(r):
    return f"s[{r}:{r + 3}]"


def generate(cfg=None):
    cfg = cfg or {}
    stamps = cfg.get("stamps", [])
    SPIN_MAX = cfg.get("spin", 1 << 15)
    a = Asm()
    used_stamps = []

    def stamp(name):
        if name in stamps:
            k = stamps.index(name)
            a(f"s_memrealtime s[{STAMP0 + 2 * k}:{STAMP0 + 2 * k + 1}]")
            used_stamps.append(name)

    def mksrd(r, p, nbytes):
        a(f"s_mov_b32 s{r}, s{p}\ns_mov_b32 s{r + 1}, s{p + 1}\ns_mov_b32 s{r + 2}, {nbytes}\ns_mov_b32 s{r + 3}, 0x20000")

    vTID = a.alloc(1)
    assert vTID.base == 0
    vLane = a.alloc(1)
    vL16 = a.alloc(1)
    vL8 = a.alloc(1)
    vOne = a.alloc(1)
    vP0 = a.alloc(1)
    vP1 = a.alloc(1)

    def signal(pairs):
        lab = a.label("L_sig")
        a(f"s_cmp_lg_u32 {sW}, 0\ns_cbranch_scc1 {lab}")
        a.begin_cond()
        a("s_mov_b64 exec, 1")
        for base, s in pairs:
            a(f"s_add_u32 {sT0}, {s}, {base}\ns_lshl_b32 {sT0}, {sT0}, 8")
            a(f"buffer_atomic_add {vOne}, {vL16}, {srd(rWS)}, {sT0} offen sc1")
        a("s_mov_b64 exec, -1")
        a.end_cond()
        a(f"{lab}:")

    def poll(pairs, target, nlanes=1):
        lab, loop = a.label("L_nopoll"), a.label("L_poll")
        a(f"s_cmp_lg_u32 {sW}, 0\ns_cbranch_scc1 {lab}")
        a.begin_cond()
        if pairs[0][1] is None:
            a(f"v_lshlrev_b32 {vP0}, 8, {vLane}\nv_add_u32 {vP0}, {pairs[0][0] * 256}, {vP0}")
        else:
            nlanes = len(pairs)
            for k, (base, s) in enumerate(pairs):
                a(f"s_add_u32 {sT0}, {s}, {base}\ns_lshl_b32 {sT0}, {sT0}, 8")
                if k == 0:
                    a(f"v_mov_b32 {vP0}, {sT0}")
                else:
                    a(f"v_writelane_b32 {vP0}, {sT0}, {k}")
        a(f"s_mov_b64 exec, {(1 << nlanes) - 1}\ns_mov_b32 {sSPIN}, 0")
        a(f"{loop}:")
        a(f"buffer_load_dword {vP1}, {vP0}, {srd(rWS)}, 0 offen sc1")
        a(f"s_add_u32 {sSPIN}, {sSPIN}, 1")
        a(f"v_cmp_gt_u32 vcc, {target}, {vP1}")
        a(f"s_cmp_lt_u32 {sSPIN}, {SPIN_MAX}")
        a(f"s_cselect_b64 vcc, vcc, 0")
        a(f"s_cbranch_vccnz {loop}")
        a("s_mov_b64 exec, -1")
        a.end_cond()
        a(f"{lab}:")
        a("s_barrier")

    a(f"s_cmp_ge_u32 s2, 256\ns_cbranch_scc1 L_end")
    stamp("start")
    a("s_load_dwordx16 s[16:31], s[0:1], 0\ns_load_dwordx8 s[32:39], s[0:1], 64")
    vA, vB, vC, vD = a.alloc(1), a.alloc(1), a.alloc(1), a.alloc(1)
    a(f"v_lshrrev_b32 {vA}, 6, {vTID}\nv_and_b32 {vLane}, 63, {vTID}")
    a(f"v_readfirstlane_b32 {sW}, {vA}")
    a(f"v_lshlrev_b32 {vL16}, 4, {vLane}\nv_lshlrev_b32 {vL8}, 3, {vLane}\nv_mov_b32 {vOne}, 1")
    a(f"s_and_b32 {sT0}, s2, 7\ns_lshr_b32 {sT1}, s2, 3")
    a(f"s_and_b32 {sMI}, {sT0}, 1\ns_lshl_b32 {sMI}, {sMI}, 3\ns_and_b32 {sT2}, {sT1}, 7\ns_add_u32 {sMI}, {sMI}, {sT2}")
    a(f"s_lshr_b32 {sJ}, {sT0}, 1\ns_lshl_b32 {sJ}, {sJ}, 2\ns_lshr_b32 {sT3}, {sT1}, 3\ns_add_u32 {sJ}, {sJ}, {sT3}")
    a(f"s_lshl_b32 {sTB}, {sT0}, 2\ns_add_u32 {sTB}, {sTB}, {sT3}\ns_mov_b32 {sC}, {sT2}")
    a(f"s_mov_b32 {sM2}, {sJ}\ns_mov_b32 {sG}, {sMI}")
    vXo, vXo2, vWo = a.alloc(1), a.alloc(1), a.alloc(1)
    a(f"v_lshrrev_b32 {vA}, 5, {vTID}\nv_and_b32 {vB}, 31, {vTID}")
    a(f"v_mul_u32_u24 {vXo}, 1280, {vA}\nv_lshl_add_u32 {vXo}, {vB}, 4, {vXo}")
    a(f"v_mov_b32 {vC}, {OOB}\nv_cmp_gt_u32 vcc, 16, {vB}")
    a(f"v_cndmask_b32 {vXo2}, {vC}, {vXo}, vcc")
    a(f"v_and_b32 {vC}, 15, {vTID}\nv_min_u32 {vC}, 14, {vC}\nv_mul_u32_u24 {vD}, 13, {vC}\nv_lshrrev_b32 {vD}, 6, {vD}")
    a(f"v_mul_u32_u24 {vD}, 1200, {vD}\nv_lshl_add_u32 {vD}, {vC}, 4, {vD}")
    a(f"v_lshrrev_b32 {vC}, 4, {vTID}\nv_mul_u32_u24 {vC}, 3840, {vC}\nv_add_u32 {vWo}, {vC}, {vD}")
    a(f"s_lshl_b32 {sA}, {sMI}, 4\ns_add_u32 {sA}, {sA}, {sJ}\ns_mul_i32 {sA}, {sA}, {8 * 1280}")
    a(f"s_mul_i32 {sB}, {sMI}, {40 * 3840}\ns_mul_i32 {sT4}, {sJ}, 80\ns_add_u32 {sB}, {sB}, {sT4}")
    a(f"s_lshl_b32 {sT5}, {sW}, 10")
    mksrd(rX, pX, 2048 * 1280)
    mksrd(rWQ, pWQKV, 640 * 3840)
    X = a.alloc(12, align=4)
    a(f"buffer_load_dwordx4 {X[0:4]}, {vXo}, {srd(rX)}, {sA} offen")
    a(f"buffer_load_dwordx4 {X[4:8]}, {vXo}, {srd(rX)}, {sA} offen offset:512")
    a(f"buffer_load_dwordx4 {X[8:12]}, {vXo2}, {srd(rX)}, {sA} offen offset:1024")
    for it in range(2):
        a(f"s_add_u32 m0, {sT5}, {LW + it * 4096}")
        a(f"buffer_load_dwordx4 {vWo}, {srd(rWQ)}, {sB} offen lds", tag="pw")
        a(f"s_add_u32 {sB}, {sB}, {16 * 3840}")
    mksrd(rPHI, pPHI, 25600)
    mksrd(rWS, pWS, WS_BYTES)
    l1, l2 = a.label("L_phi"), a.label("L_phid")
    a(f"s_mul_i32 {sT4}, {sJ}, 1600\ns_add_u32 {sT4}, {sT4}, {sT5}\ns_sub_u32 {sT4}, {sT4}, 2048")
    a(f"v_add_u32 {vC}, {sT4}, {vL16}")
    a(f"s_cmp_ge_u32 {sW}, 2\ns_cbranch_scc1 {l1}")
    a.begin_cond()
    a(f"s_add_u32 m0, {sT5}, {LW + 8192}")
    a(f"buffer_load_dwordx4 {vWo}, {srd(rWQ)}, {sB} offen lds")
    a(f"s_branch {l2}")
    a.end_cond()
    a(f"{l1}:")
    a.begin_cond()
    a(f"s_add_u32 m0, {sT5}, {LPHI - 2048}")
    a(f"buffer_load_dwordx4 {vC}, {srd(rPHI)}, 0 offen lds")
    a.end_cond()
    a(f"{l2}:")
    a.count_vm("pw")
    a.release(vXo, vXo2, vWo)

    mksrd(rTMP, pDBG, 256)
    lz = a.label("L_nozero")
    a(f"s_cmp_lg_u32 s2, 0\ns_cbranch_scc1 {lz}")
    a.begin_cond()
    a(f"v_lshlrev_b32 {vC}, 8, {vTID}\nv_mov_b32 {vD}, 0")
    a(f"buffer_store_dword {vD}, {vC}, {srd(rWS)}, 0 offen sc1")
    a("s_waitcnt vmcnt(0)\ns_barrier")
    a(f"s_cmp_lg_u32 {sW}, 0\ns_cbranch_scc1 {lz}")
    a(f"s_mov_b64 exec, 1")
    a(f"buffer_store_dword {vOne}, {vL16}, {srd(rTMP)}, 0 offen sc1")
    a("s_mov_b64 exec, -1")
    a.end_cond()
    a(f"{lz}:")

    a(f"s_mov_b32 {sONES}, 0x3f803f80\ns_mov_b32 {sLO}, 0x00003f80\ns_mov_b32 {sHI}, 0x3f800000\ns_mov_b32 {sL2E}, 0x3fb8aa3b")

    vXw, vXr, vXs, vXs2 = a.alloc(1), a.alloc(1), a.alloc(1), a.alloc(1)
    a(f"v_lshrrev_b32 {vA}, 5, {vTID}\nv_and_b32 {vB}, 31, {vTID}")
    a(f"v_and_b32 {vC}, 7, {vB}\nv_xor_b32 {vC}, {vA}, {vC}\nv_lshlrev_b32 {vC}, 4, {vC}")
    a(f"v_lshl_add_u32 {vXw}, {vB}, 7, {vC}")
    a(f"v_lshrrev_b32 {vA}, 3, {vTID}\nv_and_b32 {vB}, 7, {vTID}")
    a(f"v_and_b32 {vC}, 7, {vA}\nv_xor_b32 {vC}, {vB}, {vC}\nv_lshlrev_b32 {vC}, 4, {vC}")
    a(f"v_lshl_add_u32 {vXr}, {vA}, 7, {vC}")
    a(f"v_lshlrev_b32 {vXs}, 9, {vA}\nv_lshl_add_u32 {vXs}, {vB}, 4, {vXs}")
    a(f"v_mov_b32 {vC}, {OOB}\nv_cmp_gt_u32 vcc, 128, {vTID}")
    a(f"v_cndmask_b32 {vXs2}, {vC}, {vXs}, vcc")
    vRR, vCH, vHH = a.alloc(1), a.alloc(1), a.alloc(1)
    a(f"v_bfe_u32 {vRR}, {vLane}, 2, 2\nv_lshrrev_b32 {vHH}, 5, {vLane}")
    a(f"v_bfe_u32 {vA}, {vLane}, 4, 1\nv_and_b32 {vB}, 3, {vLane}\nv_lshl_add_u32 {vCH}, {vA}, 2, {vB}")
    vWt, vWs, vWs2 = a.alloc(1), a.alloc(1), a.alloc(1)
    a(f"v_lshrrev_b32 {vA}, 1, {vCH}\ns_lshl_b32 {sT0}, {sW}, 2\nv_add_u32 {vA}, {sT0}, {vA}")
    a(f"v_lshlrev_b32 {vB}, 3, {vA}")
    a(f"v_subrev_u32 {vC}, 88, {vB}\nv_max_i32 {vC}, 0, {vC}")
    a(f"v_add_u32 {vD}, 120, {vB}\nv_cmp_gt_u32 vcc, 10, {vA}")
    a(f"v_cndmask_b32 {vC}, {vC}, {vD}, vcc")
    a(f"v_add_u32 {vD}, 80, {vB}\nv_cmp_gt_u32 vcc, 5, {vA}")
    a(f"v_cndmask_b32 {vC}, {vC}, {vD}, vcc")
    a(f"v_and_b32 {vA}, 1, {vCH}\nv_mul_u32_u24 {vA}, 40, {vA}\nv_add_u32 {vC}, {vC}, {vA}")
    a(f"v_lshl_add_u32 {vA}, {vHH}, 3, {vRR}\nv_lshl_add_u32 {vWt}, {vA}, 8, {vC}")
    a(f"s_cmp_eq_u32 {sW}, 3\ns_mov_b32 {sCc}, 3072\ns_cmov_b32 {sCc}, 1024\ns_cselect_b32 {sT1}, 122880, {sT5}")
    a(f"s_mul_i32 {sT0}, {sMI}, 5\nv_add_u32 {vA}, {sT0}, {vHH}")
    a(f"v_lshrrev_b32 {vB}, 1, {vA}\nv_mul_u32_u24 {vB}, {sCc}, {vB}\nv_and_b32 {vA}, 1, {vA}\nv_lshl_add_u32 {vB}, {vA}, 9, {vB}")
    a(f"v_and_b32 {vA}, 31, {vLane}\nv_lshl_add_u32 {vWs}, {vA}, 4, {vB}")
    a(f"v_mov_b32 {vC}, {OOB}\nv_cmp_gt_u32 vcc, 32, {vLane}")
    a(f"v_cndmask_b32 {vWs2}, {vC}, {vWs}, vcc")
    a(f"s_mul_i32 {sB}, {sJ}, 163840\ns_add_u32 {sB}, {sB}, {sT1}\ns_add_u32 {sB}, {sB}, {WQ}")
    a(f"s_lshl_b32 {sA}, {sMI}, 2\ns_lshr_b32 {sT0}, {sJ}, 2\ns_add_u32 {sA}, {sA}, {sT0}\ns_mul_i32 {sA}, {sA}, 40960")
    a(f"s_and_b32 {sT0}, {sJ}, 3\ns_lshl_b32 {sT0}, {sT0}, 7\ns_add_u32 {sA}, {sA}, {sT0}\ns_add_u32 {sA}, {sA}, {XN}")
    vPt0, vPt1 = a.alloc(1), a.alloc(1)
    a(f"v_and_b32 {vA}, 1, {vCH}\nv_mul_u32_u24 {vA}, 800, {vA}\nv_mul_u32_u24 {vB}, 40, {vRR}\nv_add_u32 {vA}, {vA}, {vB}")
    a(f"v_lshrrev_b32 {vB}, 1, {vCH}\nv_lshl_add_u32 {vPt0}, {vB}, 3, {vA}\nv_add_u32 {vPt1}, 32, {vA}")

    S, Q = a.alloc(1), a.alloc(1)
    a(f"v_mov_b32 {S}, 0\nv_mov_b32 {Q}, 0")
    for i in range(12):
        a(f"v_dot2_f32_bf16 {S}, {X[i]}, {sONES}, {S}")
        a(f"v_dot2_f32_bf16 {Q}, {X[i]}, {X[i]}, {Q}")
    stamp("xin")
    for r in (1, 2, 4, 8):
        a(f"v_add_f32_dpp {S}, {S}, {S} row_ror:{r} row_mask:0xf bank_mask:0xf")
        a(f"v_add_f32_dpp {Q}, {Q}, {Q} row_ror:{r} row_mask:0xf bank_mask:0xf")
    a(f"v_mov_b32 {vA}, {S}\nv_mov_b32 {vB}, {Q}")
    a(f"v_permlane16_swap_b32 {vA}, {S}\nv_permlane16_swap_b32 {vB}, {Q}")
    a(f"v_add_f32 {S}, {S}, {vA}\nv_add_f32 {Q}, {Q}, {vB}")

    def finish_stats(S, Q, rs, nb):
        a(f"v_mul_f32 {S}, 0x3acccccd, {S}\nv_mul_f32 {Q}, 0x3acccccd, {Q}")
        a(f"v_fma_f32 {Q}, -{S}, {S}, {Q}\nv_max_f32 {Q}, 0, {Q}\nv_add_f32 {Q}, 0x3727c5ac, {Q}")
        a(f"v_rsq_f32 {rs}, {Q}")
        a(f"v_mul_f32_e64 {nb}, -{S}, {rs}")

    RS = a.alloc(2)
    finish_stats(S, Q, RS[0], RS[1])
    T2 = a.alloc(4, align=2)
    for i in range(12):
        t = T2[2 * (i & 1):2 * (i & 1) + 2]
        a(f"v_lshlrev_b32 {t[0]}, 16, {X[i]}\nv_and_b32 {t[1]}, 0xffff0000, {X[i]}")
        a(f"v_pk_fma_f32 {t}, {t}, {RS}, {RS} op_sel:[0,0,1] op_sel_hi:[1,0,1]")
        a(f"v_cvt_pk_bf16_f32 {X[i]}, {t[0]}, {t[1]}")
        if i == 3 or i == 7:
            a(f"ds_write_b128 {vXw}, {X[i - 3:i + 1]} offset:{LXS + (i // 4) * 4096}")
    a("s_mov_b32 exec_lo, 0xffff\ns_mov_b32 exec_hi, 0xffff")
    a(f"ds_write_b128 {vXw}, {X[8:12]} offset:{LXS + 8192}")
    a("s_mov_b64 exec, -1")
    a.release(S, Q, RS, T2, vXw)
    a.wait_vm("pw")
    a("s_waitcnt lgkmcnt(0)\ns_barrier")
    stamp("pbar")
    WT = a.alloc(12, align=4)
    for it in range(3):
        for part in range(2):
            a(f"ds_read_b64_tr_b16 {WT[4 * it + 2 * part:4 * it + 2 * part + 2]}, {vWt} offset:{LW + it * 4096 + part * 1024}")
    for it in range(3):
        a(f"ds_read_b128 {X[4 * it:4 * it + 4]}, {vXr} offset:{LXS + it * 4096}")
    for it in range(3):
        a(f"buffer_store_dwordx4 {WT[4 * it:4 * it + 4]}, {vWs if it < 2 else vWs2}, {srd(rWS)}, {sB} offen sc1", tag="pst")
        if it < 2:
            a(f"s_add_u32 {sB}, {sB}, {sCc}")
    for it in range(3):
        a(f"buffer_store_dwordx4 {X[4 * it:4 * it + 4]}, {vXs if it < 2 else vXs2}, {srd(rWS)}, {sA} offen sc1", tag="pst")
        if it < 2:
            a(f"s_add_u32 {sA}, {sA}, 16384")
    PHI = a.alloc(24, "v", align=4)
    for U in range(2):
        for s in range(3):
            for part in range(2):
                d = PHI[(U * 3 + s) * 4 + 2 * part:(U * 3 + s) * 4 + 2 * part + 2]
                if s == 2 and part == 1:
                    a(f"v_mov_b32 {d[0]}, 0\nv_mov_b32 {d[1]}, 0")
                else:
                    a(f"ds_read_b64_tr_b16 {d}, {vPt0 if U == 0 else vPt1} offset:{LPHI + (8 * s + 4 * part) * 40}")
    a.release(X, WT, vXr, vXs, vXs2, vWt, vWs, vWs2, vPt0, vPt1)

    lw2, lwo, lw1, lsd = a.label("L_w2"), a.label("L_wo"), a.label("L_w1"), a.label("L_secd")
    sR0, sR1, sZ = sA, sB, sD
    a(f"s_mov_b32 {sSECT}, 2\ns_mov_b32 {sZ}, 0\ns_mov_b32 {sR0}, 0\ns_mov_b32 {sR1}, 0\ns_mov_b32 {sSECD}, 0\ns_mov_b32 {sCc}, 1280")
    mksrd(rSEC, pW2, 1728 * 1280)
    a(f"s_cmp_ge_u32 s2, 232\ns_cbranch_scc1 {lsd}")
    a.begin_cond()
    a(f"s_cmp_ge_u32 s2, 152\ns_cbranch_scc1 {lw1}")
    a(f"s_mov_b32 {sSECT}, 0")
    a(f"s_cmp_ge_u32 s2, 112\ns_cbranch_scc1 {lwo}")
    a(f"s_lshr_b32 {sT0}, s2, 1\ns_and_b32 {sT1}, s2, 1")
    a(f"s_mul_i32 {sT2}, {sT0}, 37\ns_lshr_b32 {sT2}, {sT2}, 8\ns_mul_i32 {sT3}, {sT2}, 7\ns_sub_u32 {sT3}, {sT0}, {sT3}")
    a(f"s_mul_i32 {sT2}, {sT2}, 216")
    a(f"s_lshl_b32 {sT4}, {sT3}, 5\ns_cmp_ge_u32 {sT3}, 3\ns_cselect_b32 {sR0}, 12, 0\ns_add_u32 {sT4}, {sT4}, {sR0}")
    a(f"s_min_u32 {sR1}, {sW}, 2\ns_cmp_eq_u32 {sT3}, 6\ns_cselect_b32 {sT4}, 96, {sT4}\ns_cselect_b32 {sR1}, {sR1}, {sW}")
    a(f"s_cselect_b32 {sZ}, 1, 0\ns_cselect_b32 {sT3}, 108, 16")
    a(f"s_lshl_b32 {sR1}, {sR1}, 2\ns_add_u32 {sR0}, {sT2}, {sT4}\ns_add_u32 {sR0}, {sR0}, {sR1}\ns_add_u32 {sR1}, {sR0}, {sT3}")
    a(f"s_lshl_b32 {sT2}, {sT1}, 2\ns_add_u32 {sT2}, {sT2}, {sW}\ns_mul_i32 {sT2}, {sT2}, 56\ns_add_u32 {sT2}, {sT2}, {sT0}")
    a(f"s_mul_i32 {sSECD}, {sT2}, 5120\ns_add_u32 {sSECD}, {sSECD}, {W2F}")
    a(f"s_mul_i32 {sT1}, {sT1}, 640")
    a(f"s_branch {lw2}")
    a(f"{lwo}:")
    mksrd(rSEC, pWO, 640 * 1280)
    a(f"s_sub_u32 {sT0}, s2, 112\ns_and_b32 {sT1}, {sT0}, 1\ns_lshr_b32 {sT0}, {sT0}, 1")
    a(f"s_lshl_b32 {sT2}, {sT0}, 2\ns_add_u32 {sT2}, {sT2}, {sW}")
    a(f"s_mul_i32 {sT3}, {sT2}, 205\ns_lshr_b32 {sT3}, {sT3}, 10\ns_mul_i32 {sT4}, {sT3}, 5\ns_sub_u32 {sT2}, {sT2}, {sT4}")
    a(f"s_mul_i32 {sT3}, {sT3}, 40")
    a(f"s_lshl_b32 {sT4}, {sT2}, 3\ns_cmp_ge_u32 {sT2}, 2\ns_cselect_b32 {sR0}, 4, 0\ns_add_u32 {sT4}, {sT4}, {sR0}")
    a(f"s_cmp_eq_u32 {sT2}, 4\ns_cselect_b32 {sT4}, 16, {sT4}\ns_cselect_b32 {sT2}, 20, 4")
    a(f"s_add_u32 {sR0}, {sT3}, {sT4}\ns_add_u32 {sR1}, {sR0}, {sT2}")
    a(f"s_lshl_b32 {sT2}, {sT1}, 2\ns_add_u32 {sT2}, {sT2}, {sW}\ns_mul_i32 {sT2}, {sT2}, 20\ns_add_u32 {sT2}, {sT2}, {sT0}")
    a(f"s_mul_i32 {sSECD}, {sT2}, 5120\ns_add_u32 {sSECD}, {sSECD}, {WOF}")
    a(f"s_mul_i32 {sT1}, {sT1}, 640")
    a(f"s_branch {lw2}")
    a(f"{lw1}:")
    mksrd(rSEC, pW1, 640 * 3456)
    a(f"s_mov_b32 {sSECT}, 1\ns_mov_b32 {sCc}, 3456")
    a(f"s_sub_u32 {sT0}, s2, 152\ns_and_b32 {sT1}, {sT0}, 3\ns_lshr_b32 {sT0}, {sT0}, 2")
    a(f"s_mul_i32 {sT2}, {sT0}, 205\ns_lshr_b32 {sT2}, {sT2}, 10\ns_mul_i32 {sT3}, {sT2}, 5\ns_sub_u32 {sT3}, {sT0}, {sT3}")
    a(f"s_mul_i32 {sT2}, {sT2}, 160\ns_mul_i32 {sT4}, {sW}, 20\ns_add_u32 {sT2}, {sT2}, {sT4}")
    a(f"s_lshl_b32 {sT4}, {sT3}, 3\ns_cmp_ge_u32 {sT3}, 2\ns_cselect_b32 {sR0}, 64, 0\ns_add_u32 {sT4}, {sT4}, {sR0}")
    a(f"s_cmp_eq_u32 {sT3}, 4\ns_cselect_b32 {sT4}, 16, {sT4}\ns_cselect_b32 {sT3}, 80, 4")
    a(f"s_add_u32 {sR0}, {sT2}, {sT4}\ns_add_u32 {sR1}, {sR0}, {sT3}")
    a(f"s_lshl_b32 {sT2}, {sT1}, 2\ns_add_u32 {sT2}, {sT2}, {sW}\ns_mul_i32 {sT2}, {sT2}, 140\ns_add_u32 {sT2}, {sT2}, {sT0}")
    a(f"s_lshl_b32 {sSECD}, {sT2}, 10\ns_add_u32 {sSECD}, {sSECD}, {W1F}")
    a(f"s_mul_i32 {sT1}, {sT1}, 864")
    a(f"{lw2}:")
    a(f"s_mul_i32 {sR0}, {sR0}, {sCc}\ns_mul_i32 {sR1}, {sR1}, {sCc}\ns_add_u32 {sR0}, {sR0}, {sT1}\ns_add_u32 {sR1}, {sR1}, {sT1}")
    a.end_cond()
    a(f"{lsd}:")
    a(f"s_cmp_eq_u32 {sSECT}, 1\ns_mov_b32 exec_hi, 0xff\ns_cmov_b32 exec_hi, 0x3fffff")
    a(f"s_mul_i32 {sT0}, {sW}, {8 * SECP}")
    for e in range(8):
        s = sR0 if e < 4 else sR1
        a(f"s_add_u32 m0, {sT0}, {LSEC + e * SECP}")
        a(f"buffer_load_dwordx4 {vL16}, {srd(rSEC)}, {s} offen lds", tag="sec")
        if e not in (3, 7):
            a(f"s_add_u32 {s}, {s}, {sCc}")
    a("s_mov_b64 exec, -1")
    a("s_waitcnt lgkmcnt(0)")
    a("s_mov_b32 exec_lo, 0xf0f0f0f0\ns_mov_b32 exec_hi, 0x0f0f0f0f")
    for i in range(24):
        if i % 12 < 10:
            a(f"v_mov_b32 {PHI[i]}, 0")
    a("s_mov_b64 exec, -1")

    a.wait_vm("pst")
    stamp("pst")
    a("s_barrier")
    lab, loop = a.label("L_nodbg"), a.label("L_dbg")
    a(f"s_cmp_lg_u32 {sW}, 0\ns_cbranch_scc1 {lab}")
    a.begin_cond()
    a(f"s_mov_b64 exec, 1\ns_mov_b32 {sSPIN}, 0")
    a(f"{loop}:")
    a(f"buffer_load_dword {vP1}, {vL16}, {srd(rTMP)}, 0 offen sc1")
    a(f"s_add_u32 {sSPIN}, {sSPIN}, 1")
    a(f"v_cmp_eq_u32 vcc, 0, {vP1}")
    a(f"s_cmp_lt_u32 {sSPIN}, {SPIN_MAX}\ns_cselect_b64 vcc, vcc, 0")
    a(f"s_cbranch_vccnz {loop}")
    a("s_mov_b64 exec, -1")
    a.end_cond()
    a(f"{lab}:")
    signal([(C_X, sMI), (C_W, sJ)])
    vSt0, vSt1 = a.alloc(1), a.alloc(1)
    a(f"v_lshrrev_b32 {vA}, 4, {vLane}\nv_lshl_add_u32 {vA}, {vA}, 3, {vRR}\nv_mul_u32_u24 {vA}, {SECP}, {vA}")
    a(f"v_and_b32 {vB}, 3, {vLane}\nv_min_u32 {vC}, 2, {vB}")
    a(f"s_cmp_eq_u32 {sSECT}, 1\ns_cselect_b32 {sT0}, 8, 40\ns_mov_b32 {sT1}, 160\ns_cmov_b32 {sT1}, 216\ns_cselect_b32 {sT2}, 32, 8")
    a(f"s_mul_i32 {sT1}, {sT1}, {sW}\ns_add_u32 {sT1}, {sT1}, {LSEC}")
    a(f"v_add_u32 {vA}, {sT1}, {vA}")
    a(f"v_mad_u32_u24 {vSt0}, {vB}, {sT0}, {vA}\nv_lshl_add_u32 {vSt1}, {vC}, 3, {vA}")
    a.wait_vm("sec")
    poll([(C_X, sMI), (C_W, sJ)], 16)
    stamp("s0")

    XF = a.alloc(160, "a", align=4)
    a(f"s_lshl_b32 {sA}, {sMI}, 2\ns_add_u32 {sA}, {sA}, {sW}\ns_mul_i32 {sA}, {sA}, 40960\ns_add_u32 {sA}, {sA}, {XN}")
    a(f"s_mul_i32 {sB}, {sJ}, 163840\ns_add_u32 {sB}, {sB}, {WQ}")
    a(f"s_mul_i32 {sCc}, {sW}, 10240\ns_add_u32 {sCc}, {sCc}, 122880")
    a(f"s_mul_i32 {sT5}, {sW}, 3072")

    def a_issue(c):
        a(f"s_add_u32 m0, {sT5}, {c * 12288}")
        a(f"s_add_u32 {sT4}, m0, {sB}")
        for q in range(3):
            a(f"buffer_load_dwordx4 {vL16}, {srd(rWS)}, {sT4} offen offset:{q * 1024} sc1 lds", tag=f"ac{c}")
        for q in range(4):
            s = 4 * c + q
            a(f"buffer_load_dwordx4 {XF[4 * s:4 * s + 4]}, {vL16}, {srd(rWS)}, {sA} offen offset:{q * 1024} sc1", tag=f"ac{c}")
        a(f"s_add_u32 {sA}, {sA}, 4096")

    def a_issue_t3(lo, hi):
        for q in range(lo, hi):
            if q % 4 == 0 or q == lo:
                a(f"s_add_u32 m0, {sCc}, {(q // 4) * 4096}")
                a(f"s_add_u32 {sT4}, m0, {sB}")
            a(f"buffer_load_dwordx4 {vL16}, {srd(rWS)}, {sT4} offen offset:{(q % 4) * 1024} sc1 lds", tag="t3")

    a_issue(0)
    a_issue(1)
    SEC = a.alloc(28, "a", align=4)
    for tau in range(7):
        for part in range(2):
            d = SEC[4 * tau + 2 * part:4 * tau + 2 * part + 2]
            if tau < 6:
                a(f"ds_read_b64_tr_b16 {d}, {vSt0} offset:{part * 4 * SECP}")
            else:
                a(f"ds_read_b64_tr_b16 {d}, {vSt1} offset:{part * 4 * SECP + 192}")
        if tau < 5:
            a(f"v_add_u32 {vSt0}, {sT2}, {vSt0}")
    a("s_waitcnt lgkmcnt(0)")
    lnz = a.label("L_nz")
    a(f"s_cmp_eq_u32 {sZ}, 0\ns_cbranch_scc1 {lnz}")
    a.begin_cond()
    a("s_mov_b32 exec_lo, 0\ns_mov_b32 exec_hi, 0xffff0000")
    for i in range(20):
        a(f"v_accvgpr_write_b32 {SEC[i]}, 0")
    a("s_mov_b64 exec, -1")
    a.end_cond()
    a(f"{lnz}:")
    a.release(vSt0, vSt1)

    ACC = a.alloc(64, "v", align=4)
    WF = a.alloc(48, "v", align=4)
    vLa, vLb = a.alloc(1), a.alloc(1)
    a(f"v_add_u32 {vLa}, 61440, {vL16}\nv_add_u32 {vLb}, 122880, {vL16}")
    for c in range(10):
        a.wait_vm(f"ac{c}")
        a("s_barrier")
        for n in range(12):
            off = c * 12288 + n * 1024
            base, off = (vL16, off) if off < 61440 else (vLa, off - 61440)
            a(f"ds_read_b128 {WF[4 * n:4 * n + 4]}, {base} offset:{off}")
        if c + 2 < 10:
            a_issue(c + 2)
        elif c == 8:
            a_issue_t3(0, 5)
        else:
            a_issue_t3(5, 10)
        for n in range(12):
            s, T = 4 * c + n // 3, n % 3
            acc = ACC[16 * T:16 * T + 16]
            a(f"v_mfma_f32_32x32x16_bf16 {acc}, {WF[4 * n:4 * n + 4]}, {XF[4 * s:4 * s + 4]}, {acc if s else 0}")
    stamp("a1")
    vSs = a.alloc(1)
    a(f"s_cmp_eq_u32 {sSECT}, 1\ns_mov_b32 {sT0}, 1024\ns_cmov_b32 {sT0}, 20480\ns_cselect_b32 {sT1}, 0, {OOB}")
    a(f"s_cmp_eq_u32 {sSECT}, 2\ns_cselect_b32 {sT2}, {OOB}, 0")
    a(f"v_add_u32 {vSs}, {sT2}, {vL16}")
    for tau in range(7):
        if tau == 5:
            a(f"v_add_u32 {vSs}, {sT1}, {vL16}")
        a(f"buffer_store_dwordx4 {SEC[4 * tau:4 * tau + 4]}, {vSs}, {srd(rWS)}, {sSECD} offen sc1", tag="secst")
        if tau < 6:
            a(f"s_add_u32 {sSECD}, {sSECD}, {sT0}")
    a.release(SEC, vSs)

    UU = a.alloc(32, "v", align=4)
    KB = a.alloc(12, "v", align=4)
    E = a.alloc(20, "v", align=2)
    M2 = a.alloc(2)
    SM = a.alloc(2)

    def phi_logits(vals, between=None):
        for i in range(10):
            a(f"v_cvt_pk_bf16_f32 {KB[i]}, {vals[2 * i]}, {vals[2 * i + 1]}")
        for s in range(3):
            for U in range(2):
                u = UU[16 * U:16 * U + 16]
                a(f"v_mfma_f32_32x32x16_bf16 {u}, {PHI[(U * 3 + s) * 4:(U * 3 + s) * 4 + 4]}, {KB[4 * s:4 * s + 4]}, {u if s else 0}")
        if between:
            between()

    def softmax(sign, dst):
        op = "v_max3_f32" if sign > 0 else "v_min3_f32"
        m = M2[0]
        a(f"{op} {M2[0]}, {UU[0]}, {UU[1]}, {UU[2]}\n{op} {M2[1]}, {UU[3]}, {UU[4]}, {UU[5]}")
        for i in range(6, 18, 4):
            a(f"{op} {M2[0]}, {M2[0]}, {UU[i]}, {UU[i + 1]}\n{op} {M2[1]}, {M2[1]}, {UU[i + 2]}, {UU[i + 3]}")
        a(f"{op} {M2[0]}, {M2[0]}, {UU[18]}, {UU[19]}")
        a(f"{op} {M2[0]}, {M2[0]}, {M2[1]}, {M2[1]}")
        a(f"v_mul_f32 {M2[1]}, {sL2E}, {M2[0]}\nv_mov_b32 {M2[0]}, {sL2E}")
        neg = "neg_lo:[0,0,1] neg_hi:[0,0,1]" if sign > 0 else "neg_lo:[0,1,0] neg_hi:[0,1,0]"
        for i in range(10):
            a(f"v_pk_fma_f32 {E[2 * i:2 * i + 2]}, {UU[2 * i:2 * i + 2]}, {M2}, {M2} op_sel:[0,0,1] op_sel_hi:[1,0,1] {neg}")
        for i in range(20):
            a(f"v_exp_f32 {E[i]}, {E[i]}")
            if i == 3:
                pass
            if i >= 4 and i % 2 == 0:
                k = i // 2 - 1
                if k == 1:
                    a(f"v_pk_add_f32 {SM}, {E[0:2]}, {E[2:4]}")
                else:
                    a(f"v_pk_add_f32 {SM}, {SM}, {E[2 * k:2 * k + 2]}")
        a(f"v_pk_add_f32 {SM}, {SM}, {E[18:20]}")
        a(f"v_add_f32 {SM[0]}, {SM[0]}, {SM[1]}")
        a(f"v_rcp_f32 {SM[0]}, {SM[0]}")
        for i in range(10):
            a(f"v_pk_mul_f32 {E[2 * i:2 * i + 2]}, {E[2 * i:2 * i + 2]}, {SM} op_sel_hi:[1,0]")
        for i in range(10):
            a(f"v_cvt_pk_bf16_f32 {dst(i)}, {E[2 * i]}, {E[2 * i + 1]}")

    ROW = WF[0:32]
    vRow, vTa, vTb = a.alloc(1), a.alloc(1), a.alloc(1)
    a(f"v_mov_b32 {KB[10]}, 0\nv_mov_b32 {KB[11]}, 0")
    a(f"v_and_b32 {vA}, 31, {vLane}\nv_lshl_add_u32 {vA}, {vHH}, 7, {vA}\ns_lshl_b32 {sT0}, {sW}, 5")
    a(f"v_add_u32 {vA}, {sT0}, {vA}\nv_mul_u32_u24 {vRow}, 144, {vA}")
    a(f"s_lshr_b32 {sT0}, {sW}, 1\ns_lshl_b32 {sT0}, {sT0}, 7\ns_and_b32 {sT1}, {sW}, 1\ns_mul_i32 {sT1}, {sT1}, 40\ns_add_u32 {sT1}, {sT1}, 48")
    a(f"v_lshlrev_b32 {vA}, 1, {vHH}\nv_lshl_add_u32 {vA}, {vRR}, 2, {vA}\nv_add_u32 {vA}, {sT0}, {vA}\nv_mul_u32_u24 {vA}, 144, {vA}")
    a(f"v_min_u32 {vB}, 5, {vCH}\nv_lshl_add_u32 {vTb}, {vB}, 3, {vA}")
    a(f"v_min_u32 {vB}, 4, {vCH}\nv_lshl_add_u32 {vTa}, {vB}, 3, {vA}\nv_add_u32 {vTa}, {sT1}, {vTa}")
    kvals = [ACC[i] for i in range(20)]
    vvals = [ACC[20 + i] for i in range(20)]
    qvals = [ACC[40 + i] for i in range(4)] + [ACC[48 + i] for i in range(16)]

    def pack_v():
        for i in range(10):
            a(f"v_cvt_pk_bf16_f32 {ROW[i]}, {vvals[2 * i]}, {vvals[2 * i + 1]}")
        a(f"v_mov_b32 {ROW[10]}, {sLO}\nv_mov_b32 {ROW[11]}, 0")
        a("s_barrier")
        for q in range(3):
            a(f"ds_write_b128 {vRow}, {ROW[4 * q:4 * q + 4]} offset:{LT + 16 * q}")

    phi_logits(kvals, pack_v)
    softmax(+1, lambda i: ROW[12 + i])
    for q in range(3, 5):
        a(f"ds_write_b128 {vRow}, {ROW[4 * q:4 * q + 4]} offset:{LT + 16 * q}")
    softmax(-1, lambda i: ROW[22 + i])
    for q in range(5, 8):
        a(f"ds_write_b128 {vRow}, {ROW[4 * q:4 * q + 4]} offset:{LT + 16 * q}")
    Z4 = E[0:4]
    for i in range(4):
        a(f"v_mov_b32 {Z4[i]}, 0")
    a(f"ds_write_b128 {vL16}, {Z4} offset:{LKV + 4096}")
    vK4, vK2 = a.alloc(1), a.alloc(1)
    a(f"s_lshr_b32 {sT0}, {sW}, 1\ns_mul_i32 {sT0}, {sT0}, 5\ns_and_b32 {sT1}, {sW}, 1\ns_lshl_b32 {sT2}, {sT1}, 1\ns_add_u32 {sT2}, {sT2}, {sT0}")
    a(f"v_add_u32 {vA}, {sT2}, {vHH}\nv_mul_u32_u24 {vA}, 21, {vA}\nv_and_b32 {vB}, 31, {vLane}\nv_add_lshl_u32 {vA}, {vA}, {vB}, 4")
    a(f"v_mov_b32 {vC}, {OOB}\nv_cmp_gt_u32 vcc, 21, {vB}")
    a(f"v_cndmask_b32 {vK4}, {vC}, {vA}, vcc")
    a(f"s_add_u32 {sT0}, {sT0}, 4\ns_mul_i32 {sT0}, {sT0}, 336\ns_lshl_b32 {sT1}, {sT1}, 3\ns_add_u32 {sT0}, {sT0}, {sT1}")
    a(f"v_add_u32 {vA}, {sT0}, {vL16}\nv_cmp_gt_u32 vcc, 21, {vLane}")
    a(f"v_cndmask_b32 {vK2}, {vC}, {vA}, vcc")
    a(f"s_lshl_b32 {sA}, {sJ}, 4\ns_mul_i32 {sB}, {sA}, {KVPITCH}\ns_add_u32 {sB}, {sB}, {KVP}")
    a(f"s_mul_i32 {sA}, {sMI}, {KVPITCH}\ns_add_u32 {sA}, {sA}, {sB}")
    a("s_waitcnt lgkmcnt(0)\ns_barrier")
    stamp("ksm")
    TA = a.alloc(64, "a", align=4)
    KVA = UU[0:16]
    for ks in range(8):
        for part in range(2):
            a(f"ds_read_b64_tr_b16 {TA[8 * ks + 2 * part:8 * ks + 2 * part + 2]}, {vTa} offset:{LT + (16 * ks + part) * 144}")
        for part in range(2):
            a(f"ds_read_b64_tr_b16 {TA[8 * ks + 4 + 2 * part:8 * ks + 6 + 2 * part]}, {vTb} offset:{LT + (16 * ks + part) * 144}")
        if ks >= 2:
            k2 = ks - 2
            a(f"v_mfma_f32_32x32x16_bf16 {KVA}, {TA[8 * k2:8 * k2 + 4]}, {TA[8 * k2 + 4:8 * k2 + 8]}, {KVA if k2 else 0}")
    for k2 in (6, 7):
        a(f"v_mfma_f32_32x32x16_bf16 {KVA}, {TA[8 * k2:8 * k2 + 4]}, {TA[8 * k2 + 4:8 * k2 + 8]}, {KVA}")
    G6 = E[4:10]
    for i in range(6):
        a(f"v_cvt_pk_bf16_f32 {G6[i]}, {KVA[2 * i]}, {KVA[2 * i + 1]}")
    a(f"buffer_store_dwordx4 {G6[0:4]}, {vK4}, {srd(rWS)}, {sA} offen sc1", tag="kvst")
    a(f"buffer_store_dwordx2 {G6[4:6]}, {vK2}, {srd(rWS)}, {sA} offen sc1", tag="kvst")
    a.release(TA, vK4, vK2, vRow, vTa, vTb)
    a.wait_vm("kvst", "secst", "t3")
    stamp("kvst")
    a("s_barrier")
    a(f"s_and_b32 {sT5}, s2, 15")
    signal([(C_KV, sJ), (C_SW, sT5)])

    acc3 = ACC[48:64]
    for s in range(40 + 6):
        if s < 40:
            a(f"ds_read_b128 {WF[4 * (s % 12):4 * (s % 12) + 4]}, {vLb} offset:{s * 1024}")
        if s >= 6:
            t = s - 6
            a(f"v_mfma_f32_32x32x16_bf16 {acc3}, {WF[4 * (t % 12):4 * (t % 12) + 4]}, {XF[4 * t:4 * t + 4]}, {acc3 if t else 0}")
    a.release(XF)
    phi_logits(qvals)
    PQ = WF[0:20]
    qpos = [0, 1, 4, 5, 2, 3, 6, 7]
    softmax(+1, lambda i: PQ[qpos[i]] if i < 8 else PQ[16 + i - 8])
    softmax(-1, lambda i: PQ[8 + qpos[i]] if i < 8 else PQ[18 + i - 8])
    a.release(PHI, KB, M2, SM)
    stamp("qsm")
    vG, vF0, vF1, vO4, vO2 = [a.alloc(1) for _ in range(5)]
    a(f"v_lshlrev_b32 {vA}, 4, {vTID}\nv_mov_b32 {vC}, {OOB}\nv_cmp_gt_u32 vcc, 210, {vTID}")
    a(f"v_cndmask_b32 {vG}, {vC}, {vA}, vcc")
    a(f"v_bfe_u32 {vA}, {vLane}, 3, 2\nv_and_b32 {vB}, 3, {vLane}\nv_lshl_add_u32 {vA}, {vA}, 2, {vB}")
    a(f"v_mul_u32_u24 {vB}, 105, {vHH}\nv_add_lshl_u32 {vB}, {vB}, {vA}, 4\nv_add_u32 {vD}, 256, {vB}")
    a(f"v_mov_b32 {vC}, 3360\nv_cmp_gt_u32 vcc, 5, {vA}")
    a(f"v_cndmask_b32 {vD}, {vC}, {vD}, vcc")
    a(f"s_mov_b32 vcc_lo, 0x0f0f0f0f\ns_mov_b32 vcc_hi, 0xf0f0f0f0")
    a(f"v_cndmask_b32 {vF0}, {vC}, {vB}, vcc\nv_cndmask_b32 {vF1}, {vC}, {vD}, vcc")
    a(f"v_bfe_u32 {vA}, {vLane}, 4, 1\nv_mul_u32_u24 {vA}, 20480, {vA}\nv_and_b32 {vB}, 15, {vLane}\nv_lshl_add_u32 {vA}, {vB}, 4, {vA}")
    a(f"v_lshl_add_u32 {vO4}, {vHH}, 9, {vA}\nv_lshl_add_u32 {vO2}, {vHH}, 3, {vA}")
    a(f"s_lshl_b32 {sA}, {sMI}, 2\ns_add_u32 {sA}, {sA}, {sW}\ns_mul_i32 {sA}, {sA}, 40960\ns_mul_i32 {sT0}, {sJ}, 1280")
    a(f"s_add_u32 {sA}, {sA}, {sT0}\ns_add_u32 {sA}, {sA}, {OF}")
    poll([(C_KV, sJ)], 16)
    stamp("s1")
    GL = ACC
    for m in range(16):
        a(f"buffer_load_dwordx4 {GL[4 * m:4 * m + 4]}, {vG}, {srd(rWS)}, {sB} offen sc1")
        if m < 15:
            a(f"s_add_u32 {sB}, {sB}, {KVPITCH}")
    S8 = E[0:8]
    for m in range(16):
        for i in range(4):
            a(f"v_dot2_f32_bf16 {S8[2 * i]}, {GL[4 * m + i]}, {sLO}, {S8[2 * i] if m else 0}")
            a(f"v_dot2_f32_bf16 {S8[2 * i + 1]}, {GL[4 * m + i]}, {sHI}, {S8[2 * i + 1] if m else 0}")
    P4 = E[8:12]
    for i in range(4):
        a(f"v_cvt_pk_bf16_f32 {P4[i]}, {S8[2 * i]}, {S8[2 * i + 1]}")
    a(f"v_lshlrev_b32 {vA}, 4, {vTID}")
    a(f"ds_write_b128 {vA}, {P4} offset:{LKV}")
    a("s_waitcnt lgkmcnt(0)\ns_barrier")
    KF = ACC[0:40]
    for s in range(5):
        for u in range(2):
            a(f"ds_read_b128 {KF[(2 * s + u) * 4:(2 * s + u) * 4 + 4]}, {vF1 if u else vF0} offset:{LKV + s * 336}")
    for s in range(5):
        for u in range(2):
            d = UU[16 * u:16 * u + 16]
            a(f"v_mfma_f32_32x32x16_bf16 {d}, {KF[(2 * s + u) * 4:(2 * s + u) * 4 + 4]}, {PQ[4 * s:4 * s + 4]}, {d if s else 0}")
    RC = E[12:14]
    a(f"v_add_f32 {RC[0]}, 0x358637bd, {UU[20]}")
    a(f"v_rcp_f32 {RC[0]}, {RC[0]}")
    for i in range(10):
        a(f"v_pk_mul_f32 {UU[2 * i:2 * i + 2]}, {UU[2 * i:2 * i + 2]}, {RC} op_sel_hi:[1,0]")
    OP = E[0:10]
    for i in range(10):
        a(f"v_cvt_pk_bf16_f32 {OP[i]}, {UU[2 * i]}, {UU[2 * i + 1]}")
    a(f"buffer_store_dwordx4 {OP[0:4]}, {vO4}, {srd(rWS)}, {sA} offen sc1", tag="ost")
    a(f"buffer_store_dwordx4 {OP[4:8]}, {vO4}, {srd(rWS)}, {sA} offen offset:256 sc1", tag="ost")
    a(f"buffer_store_dwordx2 {OP[8:10]}, {vO2}, {srd(rWS)}, {sA} offen offset:1024 sc1", tag="ost")
    a.release(UU, E, ACC, WF, vG, vF0, vF1, vO4, vO2, vLa, vLb, vRR, vCH, vHH)
    a.wait_vm("ost")
    stamp("ost")
    a("s_barrier")
    signal([(C_O, sMI)])
    poll([(C_SW, None)], 16, nlanes=16)

    def load_w(base, nsteps_total, ns, regs):
        a(f"s_mul_i32 {sPF}, {sC}, {nsteps_total}\ns_mul_i32 {sT0}, {sW}, {ns}\ns_add_u32 {sPF}, {sPF}, {sT0}")
        a(f"s_mul_i32 {sPF}, {sPF}, 5120\ns_add_u32 {sPF}, {sPF}, {base}")
        for n in range(ns * 5):
            a(f"buffer_load_dwordx4 {regs[n]}, {vL16}, {srd(rWS)}, {sPF} offen offset:{(n % 4) * 1024} sc1")
            if n % 4 == 3:
                a(f"s_add_u32 {sPF}, {sPF}, 4096")

    def w1_dma(lo, hi, tag):
        per = (hi - lo) // 4
        assert per * 4 == hi - lo
        a(f"s_mul_i32 {sT5}, {sW}, {per * 1024}\ns_mul_i32 {sPF}, {sG}, 143360\ns_add_u32 {sPF}, {sPF}, {W1F}")
        for q in range(per):
            if q % 4 == 0:
                a(f"s_add_u32 m0, {sT5}, {lo * 1024 + q * 1024}")
                a(f"s_add_u32 {sT4}, m0, {sPF}")
            a(f"buffer_load_dwordx4 {vL16}, {srd(rWS)}, {sT4} offen offset:{(q % 4) * 1024} sc1 lds", tag=tag)

    def ksplit(actbase, steps_total, ns, split_mod, wregs, cin, lred, nbuf):
        tile_bytes = steps_total * 1024
        offs = [sA, sB, sCc, sD]
        for p in range(4):
            a(f"s_add_u32 {sT0}, {sW}, {p + 1}\ns_and_b32 {sT0}, {sT0}, 3\ns_lshl_b32 {sT1}, {sTB}, 2\ns_add_u32 {sT0}, {sT0}, {sT1}")
            a(f"s_mul_i32 {sT0}, {sT0}, {tile_bytes}\ns_mul_i32 {sT1}, {sW}, {ns * 1024}\ns_add_u32 {sT0}, {sT0}, {sT1}")
            a(f"s_add_u32 {offs[p]}, {sT0}, {actbase}")
        vRw = [a.alloc(1) for _ in range(3)]
        vRr = a.alloc(1)
        for p in range(3):
            a(f"s_add_u32 {sT0}, {sW}, {p + 1}\ns_and_b32 {sT0}, {sT0}, 3\ns_mul_i32 {sT0}, {sT0}, 15360\ns_add_u32 {sT0}, {sT0}, {lred + p * 5120}")
            a(f"v_add_u32 {vRw[p]}, {sT0}, {vL16}")
        a(f"s_mul_i32 {sT0}, {sW}, 15360\ns_add_u32 {sT0}, {sT0}, {lred}\nv_add_u32 {vRr}, {sT0}, {vL16}")
        yield None
        bufs = [a.alloc(4, "x", align=4) for _ in range(nbuf)]
        accs = [a.alloc(20, "v", align=4) for _ in range(2)]
        seq = [(p, ss) for p in range(4) for ss in range(ns)]

        def issue(n):
            p, ss = seq[n]
            b = bufs[n % nbuf]
            o = (ss % 4) * 1024
            if split_mod and ss % split_mod == split_mod - 1:
                a(f"buffer_load_dwordx2 {b[0:2]}, {vL8}, {srd(rWS)}, {offs[p]} offen offset:{o} sc1")
                a(f"buffer_load_dwordx2 {b[2:4]}, {vL8}, {srd(rWS)}, {offs[p]} offen offset:{o + 512} sc1")
            else:
                a(f"buffer_load_dwordx4 {b}, {vL16}, {srd(rWS)}, {offs[p]} offen offset:{o} sc1")
            if ss % 4 == 3:
                a(f"s_add_u32 {offs[p]}, {offs[p]}, 4096")

        for n in range(min(nbuf, len(seq))):
            issue(n)
        RD = None
        for n, (p, ss) in enumerate(seq):
            acc = accs[p & 1] if p < 3 else cin
            for tau in range(5):
                d = acc[4 * tau:4 * tau + 4]
                a(f"v_mfma_f32_16x16x32_bf16 {d}, {wregs[ss * 5 + tau]}, {bufs[n % nbuf]}, {d if (ss or p == 3) else 0}")
            if n + nbuf < len(seq):
                issue(n + nbuf)
            if ss == 1 and p >= 1:
                prev = accs[(p - 1) & 1]
                for tau in range(5):
                    a(f"ds_write_b128 {vRw[p - 1]}, {prev[4 * tau:4 * tau + 4]} offset:{tau * 1024}")
            if p == 3 and ss == 2:
                a("s_waitcnt lgkmcnt(0)\ns_barrier")
                RD = [accs[0], accs[1], a.alloc(20, "v", align=4)]
                for q in range(3):
                    for tau in range(5):
                        a(f"ds_read_b128 {RD[q][4 * tau:4 * tau + 4]}, {vRr} offset:{q * 5120 + tau * 1024}")
        for i in range(10):
            a(f"v_pk_add_f32 {RD[0][2 * i:2 * i + 2]}, {RD[0][2 * i:2 * i + 2]}, {RD[1][2 * i:2 * i + 2]}")
        for i in range(10):
            a(f"v_pk_add_f32 {RD[0][2 * i:2 * i + 2]}, {RD[0][2 * i:2 * i + 2]}, {RD[2][2 * i:2 * i + 2]}")
        for i in range(10):
            a(f"v_pk_add_f32 {cin[2 * i:2 * i + 2]}, {cin[2 * i:2 * i + 2]}, {RD[0][2 * i:2 * i + 2]}")
        a.release(bufs, RD, vRw, vRr)
        yield None

    def unpack(dst, src, n):
        for i in range(n):
            a(f"v_lshlrev_b32 {dst[2 * i]}, 16, {src[i]}\nv_and_b32 {dst[2 * i + 1]}, 0xffff0000, {src[i]}")

    def load40(dst, voff, r, soff):
        a(f"buffer_load_dwordx4 {dst[0:4]}, {voff}, {srd(r)}, {soff} offen")
        a(f"buffer_load_dwordx4 {dst[4:8]}, {voff}, {srd(r)}, {soff} offen offset:16")
        a(f"buffer_load_dwordx2 {dst[8:10]}, {voff}, {srd(r)}, {soff} offen offset:32")

    vRowO = a.alloc(1)
    vG40 = a.alloc(1)
    a(f"v_lshrrev_b32 {vA}, 4, {vLane}\nv_mul_u32_u24 {vG40}, 40, {vA}\nv_and_b32 {vB}, 15, {vLane}\nv_mul_u32_u24 {vB}, 1280, {vB}")
    a(f"s_lshl_b32 {sT0}, {sTB}, 2\ns_add_u32 {sT0}, {sT0}, {sW}\ns_mul_i32 {sT0}, {sT0}, {16 * 1280}\ns_mul_i32 {sT1}, {sC}, 160\ns_add_u32 {sT0}, {sT0}, {sT1}")
    a(f"v_add3_u32 {vRowO}, {vG40}, {vB}, {sT0}")
    H10 = a.alloc(10, "v", align=2)
    HC = a.alloc(20, "v", align=4)
    load40(H10, vRowO, rX, 0)
    WO = [a.alloc(4, "x", align=4) for _ in range(25)]
    load_w(WOF, 20, 5, WO)
    w1_dma(0, 100, "w1a")
    unpack(HC, H10, 10)
    g = ksplit(OF, 20, 5, 0, WO, HC, LREDB, 20)
    next(g)
    a(f"s_lshr_b32 {sT5}, {sTB}, 1")
    poll([(C_O, sT5)], 16)
    stamp("s2")
    next(g)
    a.release(WO)
    for i in range(10):
        a(f"v_cvt_pk_bf16_f32 {H10[i]}, {HC[2 * i]}, {HC[2 * i + 1]}")
    a(f"s_lshl_b32 {sA}, {sTB}, 2\ns_add_u32 {sA}, {sA}, {sW}")
    a(f"s_lshl_b32 {sCc}, {sA}, 3\ns_add_u32 {sCc}, {sCc}, {sC}\ns_lshl_b32 {sCc}, {sCc}, 7\ns_add_u32 {sCc}, {sCc}, {ST}")
    a(f"s_mul_i32 {sA}, {sA}, 20480\ns_lshr_b32 {sT0}, {sC}, 1\ns_mul_i32 {sT0}, {sT0}, 5120\ns_add_u32 {sA}, {sA}, {sT0}\ns_add_u32 {sA}, {sA}, {HF}")
    a(f"s_and_b32 {sT0}, {sC}, 1\ns_lshl_b32 {sT1}, {sT0}, 9\ns_add_u32 {sB}, {sA}, {sT1}\ns_add_u32 {sB}, {sB}, 4096")
    a(f"s_lshl_b32 {sT1}, {sT0}, 11\ns_add_u32 {sA}, {sA}, {sT1}")
    a(f"buffer_store_dwordx4 {H10[0:4]}, {vL16}, {srd(rWS)}, {sA} offen sc1", tag="hst")
    a(f"buffer_store_dwordx4 {H10[4:8]}, {vL16}, {srd(rWS)}, {sA} offen offset:1024 sc1", tag="hst")
    a(f"buffer_store_dwordx2 {H10[8:10]}, {vL8}, {srd(rWS)}, {sB} offen sc1", tag="hst")
    SQ = a.alloc(2)
    for i in range(10):
        a(f"v_dot2_f32_bf16 {SQ[0]}, {H10[i]}, {sONES}, {SQ[0] if i else 0}")
        a(f"v_dot2_f32_bf16 {SQ[1]}, {H10[i]}, {H10[i]}, {SQ[1] if i else 0}")

    def red_g(S, Q):
        for op in ("v_permlane16_swap_b32", "v_permlane32_swap_b32"):
            a(f"v_mov_b32 {vA}, {S}\nv_mov_b32 {vB}, {Q}")
            a(f"{op} {vA}, {S}\n{op} {vB}, {Q}")
            a(f"v_add_f32 {S}, {S}, {vA}\nv_add_f32 {Q}, {Q}, {vB}")

    red_g(SQ[0], SQ[1])
    a("s_mov_b64 exec, 0xffff")
    a(f"buffer_store_dwordx2 {SQ}, {vL8}, {srd(rWS)}, {sCc} offen sc1", tag="hst")
    a("s_mov_b64 exec, -1")
    a.wait_vm("hst")
    stamp("hst")
    a("s_barrier")
    a(f"s_lshr_b32 {sT5}, {sTB}, 1")
    signal([(C_H, sT5)])
    a.release(SQ)

    w1_dma(100, 140, "w1b")
    B10 = a.alloc(10, "v", align=2)
    mksrd(rTMP, pB2, 1280)
    a(f"s_mul_i32 {sT1}, {sC}, 160")
    load40(B10, vG40, rTMP, sT1)
    B1P = a.alloc(14, "v", align=2)
    mksrd(rSEC, pB1, 3456)
    a(f"v_lshrrev_b32 {vA}, 4, {vLane}\nv_min_u32 {vB}, 2, {vA}\nv_lshlrev_b32 {vA}, 3, {vA}\nv_lshlrev_b32 {vB}, 3, {vB}")
    a(f"s_mul_i32 {sT1}, {sG}, 216")
    for tau in range(7):
        a(f"buffer_load_dwordx2 {B1P[2 * tau:2 * tau + 2]}, {vA if tau < 6 else vB}, {srd(rSEC)}, {sT1} offen offset:{32 * tau}")
    T20 = a.alloc(20, "v", align=2)
    unpack(HC, H10, 10)
    unpack(T20, B10, 10)
    for i in range(10):
        a(f"v_pk_add_f32 {HC[2 * i:2 * i + 2]}, {HC[2 * i:2 * i + 2]}, {T20[2 * i:2 * i + 2]}")
    a.release(T20, B10, H10, vG40)
    B1 = a.alloc(28, "v", align=2)
    unpack(B1, B1P, 14)
    a.release(B1P)
    vLa, vLb = a.alloc(1), a.alloc(1)
    a(f"v_add_u32 {vLa}, 61440, {vL16}\nv_add_u32 {vLb}, 122880, {vL16}")

    def w1_read(dst, tau, s):
        off = (tau * 20 + s) * 1024
        base, off = (vL16, off) if off < 61440 else ((vLa, off - 61440) if off < 122880 else (vLb, off - 122880))
        a(f"ds_read_b128 {dst}, {base} offset:{off}")

    CS = a.alloc(28, "v", align=4)
    ON = a.alloc(4, "v", align=4)
    for i in range(4):
        a(f"v_mov_b32 {ON[i]}, {sONES}")
    NWF = 14
    WF = [a.alloc(4, "y", align=4) for _ in range(NWF)]
    a.wait_vm("w1a", "w1b")
    a("s_barrier")
    seq = [(s, tau) for s in range(20) for tau in range(7)]
    LAG = 8
    for n in range(len(seq) + LAG):
        if n < len(seq):
            w1_read(WF[n % NWF], seq[n][1], seq[n][0])
        if n >= LAG:
            s, tau = seq[n - LAG]
            d = CS[4 * tau:4 * tau + 4]
            a(f"v_mfma_f32_16x16x32_bf16 {d}, {WF[(n - LAG) % NWF]}, {ON}, {d if s else 0}")
    a.release(ON)
    a(f"s_lshl_b32 {sT0}, {sM2}, 3\ns_lshl_b32 {sT1}, {sW}, 1\ns_add_u32 {sT0}, {sT0}, {sT1}")
    a(f"s_mul_i32 {sA}, {sT0}, 20480\ns_add_u32 {sA}, {sA}, {HF}\ns_add_u32 {sB}, {sA}, 20480")
    a(f"s_lshl_b32 {sCc}, {sT0}, 10\ns_add_u32 {sCc}, {sCc}, {ST}")
    a(f"s_mul_i32 {sD}, {sT0}, 57344\ns_lshr_b32 {sT1}, {sG}, 1\ns_mul_i32 {sT1}, {sT1}, 7168\ns_add_u32 {sD}, {sD}, {sT1}\ns_add_u32 {sD}, {sD}, {RF}")
    vSo = a.alloc(1)
    a(f"v_lshrrev_b32 {vA}, 4, {vLane}\nv_and_b32 {vB}, 15, {vLane}\nv_lshlrev_b32 {vB}, 3, {vB}\nv_lshl_add_u32 {vSo}, {vA}, 8, {vB}")
    stamp("cs")
    poll([(C_H, sM2)], 16)
    stamp("s3")
    SP = a.alloc(8, "v", align=2)
    for t in range(2):
        for k in range(2):
            a(f"buffer_load_dwordx2 {SP[4 * t + 2 * k:4 * t + 2 * k + 2]}, {vSo}, {srd(rWS)}, {sCc} offen offset:{t * 1024 + k * 128} sc1")
    HFr = [[a.alloc(4, "x", align=4) for _ in range(20)] for _ in range(2)]

    def h_issue(s):
        for t, so in ((0, sA), (1, sB)):
            b = HFr[t][s]
            o = (s % 4) * 1024
            if s % 5 == 4:
                a(f"buffer_load_dwordx2 {b[0:2]}, {vL8}, {srd(rWS)}, {so} offen offset:{o} sc1")
                a(f"buffer_load_dwordx2 {b[2:4]}, {vL8}, {srd(rWS)}, {so} offen offset:{o + 512} sc1")
            else:
                a(f"buffer_load_dwordx4 {b}, {vL16}, {srd(rWS)}, {so} offen offset:{o} sc1")
            if s % 4 == 3:
                a(f"s_add_u32 {so}, {so}, 4096")

    AHEAD = 6
    for s in range(AHEAD):
        h_issue(s)
    ACC = a.alloc(56, "v", align=4)
    LAG = 7
    for n in range(len(seq) + LAG):
        if n < len(seq):
            w1_read(WF[n % NWF], seq[n][1], seq[n][0])
        if n >= LAG:
            s, tau = seq[n - LAG]
            if tau == 0 and s + AHEAD < 20:
                h_issue(s + AHEAD)
            for t in range(2):
                d = ACC[28 * t + 4 * tau:28 * t + 4 * tau + 4]
                a(f"v_mfma_f32_16x16x32_bf16 {d}, {WF[(n - LAG) % NWF]}, {HFr[t][s]}, {d if s else 0}")
    a.release(HFr, WF, vLa, vLb, vSo)
    stamp("c1")
    RS = a.alloc(2)
    MN = a.alloc(2)
    RP = a.alloc(14, "v", align=2)
    TT = a.alloc(4, "v", align=2)
    a(f"s_and_b32 {sT0}, {sG}, 1\ns_lshl_b32 {sT1}, {sT0}, 9\ns_add_u32 {sA}, {sD}, {sT1}\ns_add_u32 {sA}, {sA}, 6144")
    a(f"s_mul_i32 {sT1}, {sT0}, 3072\ns_add_u32 {sD}, {sD}, {sT1}")
    for t in range(2):
        a(f"v_pk_add_f32 {MN}, {SP[4 * t:4 * t + 2]}, {SP[4 * t + 2:4 * t + 4]}")
        red_g(MN[0], MN[1])
        finish_stats(MN[0], MN[1], RS[0], RS[1])
        for i in range(14):
            x = ACC[28 * t + 2 * i:28 * t + 2 * i + 2]
            tt = TT[2 * (i & 1):2 * (i & 1) + 2]
            a(f"v_pk_fma_f32 {tt}, {CS[2 * i:2 * i + 2]}, {RS}, {B1[2 * i:2 * i + 2]} op_sel:[0,1,0] op_sel_hi:[1,1,1]")
            a(f"v_pk_fma_f32 {x}, {x}, {RS}, {tt} op_sel_hi:[1,0,1]")
            a(f"v_max_f32 {x[0]}, 0, {x[0]}\nv_max_f32 {x[1]}, 0, {x[1]}")
            a(f"v_pk_mul_f32 {x}, {x}, {x}")
            a(f"v_cvt_pk_bf16_f32 {RP[i]}, {x[0]}, {x[1]}")
            if i % 4 == 3:
                a(f"buffer_store_dwordx4 {RP[i - 3:i + 1]}, {vL16}, {srd(rWS)}, {sD} offen offset:{(i // 4) * 1024} sc1", tag="rst")
        a(f"buffer_store_dwordx2 {RP[12:14]}, {vL8}, {srd(rWS)}, {sA} offen sc1", tag="rst")
        if t == 0:
            a(f"s_add_u32 {sD}, {sD}, 57344\ns_add_u32 {sA}, {sA}, 57344")
    a.release(RS, MN, RP, TT, SP, ACC, CS, B1)
    a.wait_vm("rst")
    stamp("rst")
    a("s_barrier")
    signal([(C_R, sM2)])

    W2 = [a.alloc(4, "x", align=4) for _ in range(70)]
    load_w(W2F, 56, 14, W2)
    g = ksplit(RF, 56, 14, 7, W2, HC, LREDD, 16)
    next(g)
    a(f"s_lshr_b32 {sT5}, {sTB}, 1")
    poll([(C_R, sT5)], 16)
    stamp("s4")
    next(g)
    a.release(W2)
    mksrd(rTMP, pOUT, 2048 * 1280)
    OP = a.alloc(10, "v", align=2)
    for i in range(10):
        a(f"v_cvt_pk_bf16_f32 {OP[i]}, {HC[2 * i]}, {HC[2 * i + 1]}")
    a(f"buffer_store_dwordx4 {OP[0:4]}, {vRowO}, {srd(rTMP)}, 0 offen")
    a(f"buffer_store_dwordx4 {OP[4:8]}, {vRowO}, {srd(rTMP)}, 0 offen offset:16")
    a(f"buffer_store_dwordx2 {OP[8:10]}, {vRowO}, {srd(rTMP)}, 0 offen offset:32")
    if stamps:
        a("s_waitcnt vmcnt(0)")
        stamp("end")
        a("s_waitcnt lgkmcnt(0)")
        a(f"v_mov_b32 {vA}, 0")
        for k, nm in enumerate(stamps):
            a(f"v_writelane_b32 {vA}, s{STAMP0 + 2 * k}, {k}")
        a(f"s_lshl_b32 {sT0}, s2, 2\ns_add_u32 {sT0}, {sT0}, {sW}\ns_lshl_b32 {sT0}, {sT0}, 6\ns_add_u32 {sT0}, {sT0}, {STAMPS}")
        a(f"v_lshlrev_b32 {vB}, 2, {vLane}\ns_mov_b64 exec, 0xffff")
        a(f"buffer_store_dword {vA}, {vB}, {srd(rWS)}, {sT0} offen")
        assert set(stamps) == set(used_stamps), set(stamps) - set(used_stamps)
    a("L_end:")
    a("s_endpgm")

    head = open("cdna_kernels/" + NAME + ".s.ref").read().split("\n")
    cm = [l for l in head if l.startswith(";") and "@launch" not in l and "Override" not in l and "grid=ceil" not in l]
    out = "\n".join(cm) + "\n"
    out += "; @launch grid=(256,1,1) block=(256,1,1) lds=163840\n"
    out += f'.amdgcn_target "amdgcn-amd-amdhsa--gfx950"\n.text\n.globl {NAME}_kernel\n.p2align 8\n.type {NAME}_kernel,@function\n{NAME}_kernel:\n'
    out += a.text()
    out += f'''.section .rodata,"a"
.p2align 6
.amdhsa_kernel {NAME}_kernel
  .amdhsa_next_free_vgpr 512
  .amdhsa_next_free_sgpr 102
  .amdhsa_accum_offset 256
  .amdhsa_group_segment_fixed_size 0
  .amdhsa_kernarg_size 96
  .amdhsa_user_sgpr_count 2
  .amdhsa_user_sgpr_kernarg_segment_ptr 1
  .amdhsa_system_sgpr_workgroup_id_x 1
.end_amdhsa_kernel
'''
    return out


if __name__ == "__main__":
    dst = sys.argv[1] if len(sys.argv) > 1 else "cdna_kernels/" + NAME + ".s"
    open(dst, "w").write(generate())
    print("written", dst)
```
